```python
import torch

def _softmax(x, axis=-1):
    return torch.softmax(x, dim=axis)

def _gelu(x):
    return torch.nn.functional.gelu(x, approximate='tanh')

def _silu(x):
    return torch.nn.functional.silu(x)

def _sigmoid(x):
    return torch.sigmoid(x)

def _layernorm(x, axis=-1, eps=1e-05):
    m = x.mean(dim=axis, keepdim=True)
    v = x.var(dim=axis, keepdim=True, unbiased=False)
    return (x - m) / torch.sqrt(v + eps)

def _scatter_add(tgt, idx, src, axis=0):
    return tgt.clone().index_add_(axis, idx, src)

def _segment_sum(src, seg, n):
    out = torch.zeros((n,) + src.shape[1:], dtype=src.dtype)
    return out.index_add_(0, seg, src)

def _pad(x, pw):
    flat = tuple((v for pair in reversed(pw) for v in pair))
    return torch.nn.functional.pad(x, flat)
kernel_name = 'standalone__tree_speculative_verify_tree_attention_over_candidate_token_tree__sampling'

def setup_inputs():

    _w = lambda a: (lambda t: t.to(torch.bfloat16) if t.is_floating_point() else t)(torch.as_tensor(a))
    B, Hq, Hkv, T, C, D = (16, 32, 8, 1, 4096, 128)
    tree_mask = torch.zeros((B, T, T), dtype=float)
    for b in range(B):
        parent = torch.zeros(T, dtype=torch.int64)
        for i in range(1, T):
            parent[i] = int(torch.randint(0, i, (1,)).item())
        for i in range(T):
            j = i
            tree_mask[b, i, j] = 1.0
            while j > 0:
                j = parent[j]
                tree_mask[b, i, j] = 1.0
    return {'q': _w((lambda *s: torch.randn(*s, dtype=torch.bfloat16) * 0.8)(B, Hq, T, D)), 'k_cache': _w((lambda *s: torch.randn(*s, dtype=torch.bfloat16) * 0.8)(B, Hkv, C, D)), 'v_cache': _w((lambda *s: torch.randn(*s, dtype=torch.bfloat16) * 0.05)(B, Hkv, C, D)), 'k_tree': _w((lambda *s: torch.randn(*s, dtype=torch.bfloat16) * 0.8)(B, Hkv, T, D)), 'v_tree': _w((lambda *s: torch.randn(*s, dtype=torch.bfloat16) * 0.05)(B, Hkv, T, D)), 'tree_mask': _w(tree_mask)}

def reference(q, k_cache, v_cache, k_tree, v_tree, tree_mask):
    B, Hq, T, D = q.shape
    Hkv, C = (k_cache.shape[1], k_cache.shape[2])
    rep = Hq // Hkv
    kc = (lambda x, n, axis: torch.repeat_interleave(x, n, dim=axis))(k_cache, rep, axis=1)
    vc = (lambda x, n, axis: torch.repeat_interleave(x, n, dim=axis))(v_cache, rep, axis=1)
    kt = (lambda x, n, axis: torch.repeat_interleave(x, n, dim=axis))(k_tree, rep, axis=1)
    vt = (lambda x, n, axis: torch.repeat_interleave(x, n, dim=axis))(v_tree, rep, axis=1)
    k = torch.concatenate([kc, kt], axis=2)
    v = torch.concatenate([vc, vt], axis=2)
    scale = D ** (-0.5)
    scores = torch.einsum('bhqd,bhkd->bhqk', q, k) * scale
    ctx_mask = torch.ones((B, 1, T, C), dtype=scores.dtype)
    tm = tree_mask[:, None, :, :].clone()
    full_mask = torch.concatenate([ctx_mask, tm], axis=-1)
    scores = scores + (1.0 - full_mask) * -1000000000.0
    p = _softmax(scores, axis=-1)
    return torch.einsum('bhqk,bhkd->bhqd', p, v)
```

```python
import sys, struct, math
from asmutil import build
NAME = "standalone__tree_speculative_verify_tree_attention_over_candidate_token_tree__sampling"
KN = NAME + "_kernel"
def f2u(x): return struct.unpack("<I", struct.pack("<f", x))[0]
HEADER = open("cdna_kernels/" + NAME + ".s.ref").read().split("; Override launch")[0]

DOC = """;
;
; Hand-off     the second half stores its partial result (O, max, sum) to d_ws as 8-byte {value, tag} pairs with
;"""

def gen(D=5, D2=6, TI=2.15, OFF=0.25, SK=1.4, kfa=5, kp=12, LV=10, px=13, warm=64, wide=None, umax=0):
    G = 256; W = 4; NIT = 8; flags = "nt"
    FO = 0; FA = 5 * 2048; FM = FA + 256; FC = FM + 64; FP = FC + 4; FK = FC + 8
    FT = FA + 512; SB = FA + 1024; KB = SB + W * 8192; LDS = KB + W * 16384
    assert KB % 1024 == 0 and 4 <= D < D2 <= 11 and D2 + 4 <= LV <= 14
    L = []
    def a(s, c=None):
        for t in s.split("\n"):
            if t.endswith(":") or t.startswith(".") or t.startswith(";"): L.append(t)
            else: L.append("    " + t)
        if c: L[-1] = L[-1].ljust(84) + " ; " + c
    def sec(t): L.append(""); L.append("; ---- " + t)
    L.append(HEADER.rstrip()); L.append(DOC)
    L.append(f"; @launch grid=({G},1,1) block=({(W+1)*64},1,1) lds={LDS}")
    a('.amdgcn_target "amdgcn-amd-amdhsa--gfx950"')
    a(f".text\n.globl {KN}\n.p2align 8\n.type {KN},@function\n{KN}:")
    vKoff = 2; vKrd = 6; vVoff = 10
    vM = 11; vG = 12; vT0 = 13; vT1 = 14; vT2 = 15
    vQ = 16; vAcc = 32; vMk = 40; vPc = 44; vP = 48; vKf = 64; vS = 80; vSa = 92; vPa = 93; vOne = 94; vSlot = 95; vA = 96; vV = 128
    NV = vV + 64
    fR = 128; fF = 168; fN = 169; fO = 172
    sK = 24; sV = 28; sOff = 32; sOffV = 33
    sWave = 3; sP = 22; sHalf = 23; sCnt = 36; sC = 37; sSel0 = 38; sSel1 = 39; sLds = 40; sT = 41; sT2 = 42; sMask = 43
    sTag = 35; sSched = 34; sRef = 44; sNow = 46
    c = (128 ** -0.5) * math.log2(math.e)
    NEG = hex(f2u(-3.0e38))
    fx = lambda t: int(round(t * 100 * 256))
    a(f"s_cmp_ge_u32 s2, {G}", "extra workgroups leave at once")
    a("s_cbranch_scc1 L_end")
    a("s_load_dwordx16 s[4:19], s[0:1], 0", "q k v k_tree v_tree mask out debug")
    a("s_load_dwordx2 s[20:21], s[0:1], 64", "ws")
    a(f"s_memrealtime s[{sRef}:{sRef+1}]", "start of this wave (tag candidate, pace reference)")
    a("v_lshrrev_b32 v1, 6, v0")
    a("v_and_b32 v0, 63, v0", "lane")
    a(f"v_readfirstlane_b32 s{sWave}, v1", "wave")
    a(f"s_bfe_u32 s{sHalf}, s2, 0x10003", "half = bit 3 of the workgroup id; partner = id ^ %d" % px)
    a(f"s_lshr_b32 s{sP}, s2, 4")
    a(f"s_lshl_b32 s{sP}, s{sP}, 3")
    a(f"s_mul_i32 s{sT}, s{sHalf}, {px}")
    a(f"s_xor_b32 s{sT}, s{sT}, s2")
    a(f"s_and_b32 s{sT}, s{sT}, 7")
    a(f"s_or_b32 s{sP}, s{sP}, s{sT}", "pair = batch*8 + kv head")
    a(f"v_lshrrev_b32 v{vT0}, 4, v0", "g = lane >> 4")
    a(f"v_and_b32 v{vT1}, 15, v0", "c = lane & 15")
    a(f"v_lshlrev_b32 v{vVoff}, 4, v0", "lane * 16")
    a(f"s_cmp_eq_u32 s{sWave}, {W}")
    a("s_cbranch_scc1 L_helper")
    sec("streaming waves: prologue")
    a(f"v_lshlrev_b32 v{vT2}, 6, v{vT0}")
    a(f"v_xor_b32 v{vKoff}, v{vVoff}, v{vT2}", "K source offset: row 4j+g gets chunk c ^ (4g + j)")
    for j in range(1, 4):
        a(f"v_xor_b32 v{vKoff+j}, {j*16}, v{vKoff}")
    a(f"s_lshl_b32 s{sLds}, s{sWave}, 14")
    a(f"s_add_u32 s{sLds}, s{sLds}, {KB}", "K ring of this wave: 4 units of 16 rows")
    a(f"s_lshl_b32 s{sT}, s{sP}, 20")
    a(f"s_lshl_b32 s{sOff}, s{sHalf}, 2")
    a(f"s_add_u32 s{sOff}, s{sOff}, s{sWave}")
    a(f"s_lshl_b32 s{sOff}, s{sOff}, 12", "first unit; the next ones follow every 32 KiB")
    RB = 1 << 20; UST = 32768
    a(f"s_mov_b32 s{sK+2}, {RB}")
    a(f"s_mov_b32 s{sK+3}, 0x20000")
    a(f"s_mov_b32 m0, s{sLds}")
    a(f"v_and_b32 v1, 3, v{vT1}", "head of this MFMA column")
    a(f"v_lshlrev_b32 v{vSa}, 8, v1")
    a(f"v_lshl_add_u32 v{vSa}, v{vT0}, 4, v{vSa}")
    a(f"s_lshl_b32 s{sT2}, s{sP}, 10")
    a(f"v_add_u32 v{vSa}, s{sT2}, v{vSa}", "Q offset (B operand layout)")
    a(f"s_mov_b32 s{sOffV}, s{sOff}")
    a("s_waitcnt lgkmcnt(0)")
    a(f"s_add_u32 s{sK}, s6, s{sT}")
    a(f"s_addc_u32 s{sK+1}, s7, 0")
    def ldK(i):
        jj = i % 4
        a(f"buffer_load_dwordx4 v{vKoff+jj}, s[{sK}:{sK+3}], s{sOff} offen offset:{jj*1024} {flags} lds")
        if jj == 3:
            a(f"s_add_u32 m0, s{sLds}, {((i // 4 + 1) % 4) * 4096}")
            a(f"s_add_u32 s{sOff}, s{sOff}, {UST}")
    def ldV(e):
        e %= 16
        a(f"buffer_load_dwordx4 v[{vV+4*e}:{vV+4*e+3}], v{vVoff}, s[{sV}:{sV+3}], s{sOffV} offen offset:{(e%4)*1024} {flags}")
        if e % 4 == 3: a(f"s_add_u32 s{sOffV}, s{sOffV}, {UST}")
    lab = [0]
    def winwait():
        lab[0] += 1
        a(f"s_waitcnt vmcnt({D2-1})")
        a(f"s_cbranch_vccnz L_w{lab[0]}")
        a(f"s_waitcnt vmcnt({D-1})")
        a(f"L_w{lab[0]}:")
    for i in range(4): ldK(i)
    for q in range(4):
        a(f"global_load_dwordx4 v[{vQ+4*q}:{vQ+4*q+3}], v{vSa}, s[4:5] offset:{q*64}")
    for i in range(4, D): ldK(i)
    a(f"s_add_u32 s{sV}, s8, s{sT}")
    a(f"s_addc_u32 s{sV+1}, s9, 0")
    a(f"s_mov_b32 s{sV+2}, {RB}")
    a(f"s_mov_b32 s{sV+3}, 0x20000")
    a(f"v_xor_b32 v{vT2}, v{vT0}, v{vT1}")
    a(f"v_lshlrev_b32 v{vT2}, 4, v{vT2}")
    a(f"v_lshl_add_u32 v{vT2}, v1, 10, v{vT2}")
    a(f"v_lshrrev_b32 v{vKrd}, 2, v{vT1}", "u = column group")
    for u in range(4):
        a(f"v_cmp_eq_u32 vcc, {u}, v{vKrd}")
        a("s_nop 1")
        a(f"v_cndmask_b32 v{vMk+u}, 0, -1, vcc", f"mask of column group {u}")
    a(f"v_lshl_add_u32 v{vKrd}, v{vKrd}, 8, v{vT2}")
    a(f"v_add_u32 v{vKrd}, s{sLds}, v{vKrd}", "A row i reads K row 4*(i&3) + (i>>2)")
    for j in range(1, 4):
        a(f"v_xor_b32 v{vKrd+j}, {j*64}, v{vKrd}")
    a(f"v_lshl_add_u32 v{vSa}, v{vT0}, 2, v1")
    a(f"v_lshlrev_b32 v{vSa}, 4, v{vSa}")
    a(f"s_lshl_b32 s{sT}, s{sWave}, 13")
    a(f"s_add_u32 s{sT}, s{sT}, {SB}")
    a(f"v_add_u32 v{vSa}, s{sT}, v{vSa}", "score address: 256 B per unit")
    a(f"v_lshlrev_b32 v1, 4, v1", "row of the maxima table")
    a(f"s_mov_b32 s{sC}, {hex(f2u(c))}", "log2(e) / sqrt(128)")
    a(f"s_mov_b32 s{sSel0}, 0x05040100")
    a(f"s_mov_b32 s{sSel1}, 0x07060302")
    a(f"s_mov_b32 s{sCnt}, {NIT}")
    tper = fx(TI)
    a(f"s_cmp_eq_u32 s{sHalf}, 0")
    a(f"s_cselect_b32 s{sSched}, {fx(SK)}, 0", "the second half runs a little ahead: its result is needed first")
    a(f"s_add_u32 s{sSched}, s{sSched}, {fx(OFF - SK / 2 + (D2 + 1) * TI / 16)}", "pace line, in 1/256 clock ticks")
    if umax: a(f"s_mov_b32 s{sMask}, {128 if umax == 1 else 4}", "first look: a word that stays zero")
    a("s_mov_b64 vcc, 0", "vcc != 0: wide window")
    a(f"v_mov_b32 v{vM}, {NEG}")
    for i in range(8):
        a(f"v_mov_b32 v{vAcc+i}, 0")
    a(f"v_mov_b32 v{vPa}, {FC}")
    a(f"v_mov_b32 v{vOne}, 1")
    a("s_barrier", "the helper has cleared the LDS counters")
    for i in range(D, D2 + 3):
        a(f"s_waitcnt vmcnt({D - 1 + (4 if i - D < 4 else 0)})")
        ldK(i)
    a(f"s_branch L_k{D2+3}")
    def ctl_eval(kphase):
        if kphase:
            a(f"s_cmp_lg_u32 s{sTag}, 0")
            a(f"s_cselect_b32 s{sRef}, s{sTag}, s{sRef}", "common time origin once it is there")
            if umax: a(f"s_mov_b32 s{sMask}, 4", "from the second look on: debug[1]")
        a(f"s_add_u32 s{sSched}, s{sSched}, {tper}")
        a(f"s_sub_u32 s{sNow}, s{sNow}, s{sRef}")
        a(f"s_lshl_b32 s{sNow}, s{sNow}, 8")
        a(f"s_cmp_gt_i32 s{sNow}, s{sSched}")
        a("s_cselect_b64 vcc, -1, 0", "behind the pace line: one more load in flight")
    def hookK(n, check=True):
        if n % 4 == 3:
            for q in range(4):
                a(f"ds_read_b128 v[{vKf+4*q}:{vKf+4*q+3}], v{vKrd+q} offset:{(n//4)*4096}")
            if check and n == 15:
                a(f"s_memrealtime s[{sNow}:{sNow+1}]")
                if umax: a(f"s_load_dword s{sTag}, s[18:19], s{sMask}")
                else: a(f"s_load_dword s{sTag}, s[18:19], 0")
        elif n % 4 == 0:
            a("s_waitcnt lgkmcnt(0)")
            for q in range(4):
                src = "0" if q == 0 else f"v[{vS}:{vS+3}]"
                a(f"v_mfma_f32_16x16x32_bf16 v[{vS}:{vS+3}], v[{vKf+4*q}:{vKf+4*q+3}], v[{vQ+4*q}:{vQ+4*q+3}], {src}")
            if check and n == 0: ctl_eval(True)
        elif n % 4 == 2:
            a("s_nop 3", "MFMA result -> DS / VALU read: 8 wait states")
            a(f"ds_write_b128 v{vSa}, v[{vS}:{vS+3}]")
            a(f"v_max3_f32 v{vM}, v{vM}, v{vS}, v{vS+1}")
            a(f"v_max3_f32 v{vM}, v{vM}, v{vS+2}, v{vS+3}")
            a(f"v_add_u32 v{vSa}, 256, v{vSa}")
    sec(f"phase 1: step i issues K load i; after it load i-{D2} has landed")
    a(".p2align 6")
    a("L_kloop:")
    for i in range(16):
        if i == D2 + 3: a(f"L_k{i}:")
        winwait(); ldK(i); hookK((i - D2) % 16)
    a(f"s_sub_u32 s{sCnt}, s{sCnt}, 1")
    a(f"s_cmp_lg_u32 s{sCnt}, 0")
    a("s_cbranch_scc1 L_kloop")
    sec("first V loads while the last K units are scored; maximum of the workgroup")
    for i in range(D2):
        winwait(); ldV(i)
        n = (i - D2) % 16
        hookK(n, check=False)
    nx = [D2]
    def xstep():
        winwait(); ldV(nx[0]); nx[0] += 1
    xstep()
    hookK(0, check=False)
    xstep()
    a("s_nop 3")
    hookK(2)
    a(f"v_mov_b32 v{vT1}, v{vM}")
    a(f"v_subrev_u32 v{vSa}, {32*256}, v{vSa}")
    a(f"s_lshl_b32 s{sT}, s{sWave}, 2")
    a(f"v_permlane16_swap_b32 v{vM}, v{vT1}")
    a(f"v_max_f32 v{vM}, v{vM}, v{vT1}")
    a(f"v_mov_b32 v{vT1}, v{vM}")
    a(f"v_add_u32 v{vT2}, s{sT}, v1")
    a(f"s_mov_b32 s{sCnt}, {NIT - 1}")
    a(f"v_permlane32_swap_b32 v{vM}, v{vT1}")
    a(f"v_max_f32 v{vM}, v{vM}, v{vT1}")
    a(f"ds_write_b32 v{vT2}, v{vM} offset:{FM}")
    a("s_mov_b64 exec, 1")
    a("s_waitcnt lgkmcnt(0)")
    a(f"ds_add_u32 v{vPa}, v{vOne} offset:{FK-FC}", "scores and maximum of this wave are in LDS")
    a("s_mov_b64 exec, -1")
    while nx[0] < LV: xstep()
    a(f"s_add_u32 s{sSched}, s{sSched}, {fx((LV - D2) * TI / 16)}")
    a("L_msync:")
    a(f"ds_read_b32 v{vT1}, v{vPa} offset:{FK-FC}")
    a(f"ds_read_b128 v[{vPc}:{vPc+3}], v1 offset:{FM}")
    a("s_waitcnt lgkmcnt(0)")
    a(f"v_readfirstlane_b32 s{sT}, v{vT1}")
    a(f"s_cmp_lg_u32 s{sT}, {W}")
    a("s_cbranch_scc1 L_msync")
    a(f"v_max3_f32 v{vM}, v{vPc}, v{vPc+1}, v{vPc+2}")
    a(f"v_max_f32 v{vM}, v{vM}, v{vPc+3}")
    a(f"v_mul_f32 v{vM}, s{sC}, v{vM}", "scaled maximum of the workgroup's scores")
    def hookV(n, check=True):
        if n % 2 == 1:
            u = (n % 8) // 2
            lo = vV + 4 * (n - 1); hi = vV + 4 * n
            for d in range(8):
                a(f"v_perm_b32 v{vA+4*d+u}, v{hi + d//2}, v{lo + d//2}, s{sSel0 + d%2}")
            if n % 8 == 7:
                for d in range(8):
                    k = d % 2; uu = d // 2
                    a(f"v_mfma_f32_16x16x32_bf16 v[{vAcc+4*k}:{vAcc+4*k+3}], v[{vA+4*d}:{vA+4*d+3}], v[{vP+4*uu}:{vP+4*uu+3}], v[{vAcc+4*k}:{vAcc+4*k+3}]")
        elif n % 8 == 0:
            a(f"ds_read_b128 v[{vS}:{vS+3}], v{vSa}")
            a(f"ds_read_b128 v[{vS+4}:{vS+7}], v{vSa} offset:256")
            if check and n == 0: a(f"s_memrealtime s[{sNow}:{sNow+1}]")
            a(f"v_add_u32 v{vSa}, 512, v{vSa}")
        elif n % 8 == 2:
            a("s_waitcnt lgkmcnt(0)")
            if check and n == 2: ctl_eval(False)
            for i in range(8):
                a(f"v_fma_f32 v{vS+i}, v{vS+i}, s{sC}, -v{vM}")
            for i in range(8):
                a(f"v_exp_f32 v{vS+i}, v{vS+i}")
        elif n % 8 == 4:
            for i in range(4):
                a(f"v_cvt_pk_bf16_f32 v{vPc+i}, v{vS+2*i}, v{vS+2*i+1}")
            for uu in range(2):
                for i in range(4):
                    a(f"v_and_b32 v{vP+4*uu+i}, v{vMk+uu}, v{vPc+i}")
        elif n % 8 == 6:
            for uu in range(2, 4):
                for i in range(4):
                    a(f"v_and_b32 v{vP+4*uu+i}, v{vMk+uu}, v{vPc+i}")
    sec(f"phase 2: step k issues V load k+{LV} and consumes load k (ring of 16 loads, tiles of 8)")
    a(".p2align 6")
    a("L_vloop:")
    for k in range(16):
        winwait(); ldV(k + LV); hookV(k)
    a(f"s_sub_u32 s{sCnt}, s{sCnt}, 1")
    a(f"s_cmp_lg_u32 s{sCnt}, 0")
    a("s_cbranch_scc1 L_vloop")
    def fin_addr():
        a(f"s_lshl_b32 s{sT}, s{sWave}, 11")
        a(f"v_add_u32 v{vSlot}, s{sT}, v{vVoff}", "own partial slot")
        a(f"v_and_b32 v{vT0}, 3, v0")
        a(f"v_lshlrev_b32 v{vT0}, 8, v{vT0}")
        a(f"v_and_b32 v{vT1}, 0x30, v0")
        a(f"v_lshl_add_u32 v{vT0}, v{vT1}, 2, v{vT0}")
        a(f"v_and_b32 v{vT1}, 12, v0")
        if wide is None: a(f"v_add_u32 v{vT0}, v{vT0}, v{vT1}")
        else: a(f"v_lshl_add_u32 v{vT0}, v{vT1}, 2, v{vT0}")
        a(f"s_lshl_b32 s{sT}, s{sP}, 10")
        a(f"v_add_u32 v{vT0}, s{sT}, v{vT0}", "output offset: lane (g, u, h) holds dims 32g + 8r + 2u + {0,1} of head h")
        a(f"s_lshl_b32 s{sT}, s{sP}, 13")
        a(f"s_add_u32 s{sT}, s{sT}, 2048")
        a(f"v_add_u32 v{vG}, s{sT}, v{vVoff}", "hand-off record of the pair in ws")
        a(f"v_lshlrev_b32 v{vT2}, 2, v0")
    sec("last 16 V loads")
    fin_addr()
    kf = kfa - (LV - D2)
    assert 0 <= kf < 16 - LV < kp
    for k in range(16):
        if k + LV == 16: a("L_flushed:")
        if k == kp: a(f"ds_write_b32 v{vPa}, v{vOne} offset:{FP-FC}", "nearly done: the helper starts looking for the record")
        if k + LV < 16:
            if k == kf:
                a(f"s_cmp_eq_u32 s{sHalf}, 0", "first half: the second halves are finishing, take their share")
                a("s_cbranch_scc0 L_noflush")
                for kk in range(k, 16 - LV): ldV(kk + LV)
                for kk in range(k, 16 - LV):
                    if kk % 2 == 1: a(f"s_waitcnt vmcnt({15-kk})")
                    hookV(kk, check=False)
                a("s_branch L_flushed")
                a("L_noflush:")
            winwait(); ldV(k + LV)
        else:
            if k % 2 == 1: a(f"s_waitcnt vmcnt({15-k})")
        hookV(k)
    a("s_nop 6", "MFMA result -> DS read: 8 wait states")
    a(f"ds_write_b128 v{vSlot}, v[{vAcc}:{vAcc+3}] offset:{FO}")
    a(f"ds_write_b128 v{vSlot}, v[{vAcc+4}:{vAcc+7}] offset:{FO+1024}")
    sec("all five waves arrive here; the last one finishes (DS operations of a wave execute in order)")
    a("L_arrive:")
    a("s_mov_b64 exec, 1")
    a(f"ds_add_rtn_u32 v{fN}, v{vPa}, v{vOne}")
    a("s_mov_b64 exec, -1")
    for s in range(5):
        for k in range(2):
            a(f"ds_read_b128 v[{fR+8*s+4*k}:{fR+8*s+4*k+3}], v{vVoff} offset:{FO+s*2048+k*1024}")
    a(f"ds_read_b32 v{fF}, v{vT2} offset:{FA}")
    a("s_waitcnt lgkmcnt(11)")
    a(f"v_readfirstlane_b32 s{sT}, v{fN}")
    a(f"s_cmp_lg_u32 s{sT}, {W}")
    a("s_cbranch_scc1 L_fin")
    a("s_waitcnt lgkmcnt(7)")
    for i in range(8):
        a(f"v_add_f32 v{fR+i}, v{fR+i}, v{fR+8+i}")
    a("s_waitcnt lgkmcnt(3)")
    for i in range(8):
        a(f"v_add_f32 v{fR+16+i}, v{fR+16+i}, v{fR+24+i}")
    a(f"s_cmp_eq_u32 s{sHalf}, 0")
    a("s_waitcnt lgkmcnt(0)")
    a("s_cbranch_scc1 L_out")
    for i in range(8):
        a(f"v_add_f32 v{fO+2*i}, v{fR+i}, v{fR+16+i}")
        a(f"v_mov_b32 v{fO+2*i+1}, v{fF}")
        if i % 2 == 1:
            k = i // 2
            a(f"global_store_dwordx4 v{vG}, v[{fO+4*k}:{fO+4*k+3}], s[20:21] offset:{k*1024-2048} sc1")
    a(f"global_store_dwordx4 v{vG}, v[{fR+32}:{fR+35}], s[20:21] offset:2048 sc1")
    a("s_endpgm")
    a("L_out:")
    for i in range(8):
        a(f"v_add_f32 v{fR+i}, v{fR+i}, v{fR+16+i}")
    for i in range(8):
        a(f"v_fma_f32 v{fR+i}, v{fR+i}, v{fF}, v{fR+32+i}")
    for r in range(4):
        a(f"v_cvt_pk_bf16_f32 v{fO+r}, v{fR+r}, v{fR+4+r}")
    if wide is None:
        for r in range(4):
            a(f"global_store_dword v{vT0}, v{fO+r}, s[16:17] offset:{r*16}")
    else:
        x = [fO + r for r in range(4)]; t0 = fO + 4; t1 = fO + 5
        a(f"v_mov_b32 v{t0}, v{x[1]}")
        a(f"v_mov_b32 v{t1}, v{x[3]}")
        a(f"v_mov_b32_dpp v{x[1]}, v{x[0]} row_shl:4 row_mask:0xf bank_mask:0x5")
        a(f"v_mov_b32_dpp v{x[3]}, v{x[2]} row_shl:4 row_mask:0xf bank_mask:0x5")
        a(f"v_mov_b32_dpp v{x[0]}, v{t0} row_shr:4 row_mask:0xf bank_mask:0xa")
        a(f"v_mov_b32_dpp v{x[2]}, v{t1} row_shr:4 row_mask:0xf bank_mask:0xa")
        a(f"v_mov_b32 v{t1}, v{x[3]}")
        a(f"v_mov_b32 v{t0}, v{x[2]}")
        a(f"v_mov_b32_dpp v{x[3]}, v{x[1]} row_shl:8 row_mask:0xf bank_mask:0x3")
        a(f"v_mov_b32_dpp v{x[2]}, v{x[0]} row_shl:8 row_mask:0xf bank_mask:0x3")
        a(f"v_mov_b32_dpp v{x[1]}, v{t1} row_shr:8 row_mask:0xf bank_mask:0xc")
        a(f"v_mov_b32_dpp v{x[0]}, v{t0} row_shr:8 row_mask:0xf bank_mask:0xc")
        a(f"global_store_dwordx4 v{vT0}, v[{fO}:{fO+3}], s[16:17] {wide}")
    a("L_fin:")
    a("s_endpgm")
    sec("helper wave")
    a("L_helper:")
    hZero = 2; hLS = 3
    hO0 = 20; hMt = 28; hM = 29; hL = 30
    hQ = 44; hKt = 48; hVt = 52; hP = 64; hT = 100
    PO = lambda i: hP + 2 * i
    hPM = PO(8); hPL = PO(9)
    sB = 48
    a(f"v_mov_b32 v{hZero}, 0")
    a(f"v_mov_b32 v{vPa}, {FC}")
    a(f"v_mov_b32 v{hZero+1}, 0")
    a(f"v_mov_b32 v{vOne}, 1")
    a(f"ds_write_b64 v{vPa}, v[{hZero}:{hZero+1}]")
    a(f"ds_write_b32 v{vPa}, v{hZero} offset:{FK-FC}")
    a(f"s_mov_b32 s{sTag}, 0")
    if umax:
        a("s_cmp_ge_u32 s2, 8")
        a("s_waitcnt lgkmcnt(0)")
        a("s_barrier")
        a("s_cbranch_scc1 L_h_notag")
        a(f"v_mov_b32 v{hT}, s{sRef}")
        a("s_mov_b64 exec, 1")
        a(f"global_atomic_umax v{hZero}, v{hT}, s[18:19] offset:4", "debug[1] = latest start among workgroups 0..7")
        a("s_mov_b64 exec, -1")
        a("s_cmp_lg_u32 s2, 0")
        a("s_cbranch_scc1 L_h_notag")
    else:
        a("s_cmp_lg_u32 s2, 0")
        a("s_waitcnt lgkmcnt(0)")
        a("s_barrier")
        a("s_cbranch_scc1 L_h_notag")
    def propose():
        a(f"s_or_b32 s{sRef}, s{sRef}, 1", "install a non-zero tag in debug[0] unless one is there")
        a(f"v_mov_b32 v{hT+2}, s{sRef}")
        a(f"v_mov_b32 v{hT+3}, 0")
        a("s_mov_b64 exec, 1")
        a(f"global_atomic_cmpswap v{hT+1}, v{hZero}, v[{hT+2}:{hT+3}], s[18:19] sc0")
        a("s_mov_b64 exec, -1")
        a("s_waitcnt vmcnt(0)")
        a(f"v_readfirstlane_b32 s{sTag}, v{hT+1}")
        a(f"s_cmp_eq_u32 s{sTag}, 0")
        a(f"s_cselect_b32 s{sTag}, s{sRef}, s{sTag}")
    propose()
    a("L_h_notag:")
    a(f"s_mov_b32 s{sC}, {hex(f2u(c))}")
    a(f"s_cmp_lg_u32 s{sHalf}, 0")
    a("s_cbranch_scc1 L_h_warm" if warm else "s_cbranch_scc1 L_h_notree")
    a(f"v_and_b32 v{hT}, 3, v0")
    a(f"v_lshlrev_b32 v{hT}, 8, v{hT}")
    a(f"v_and_b32 v{hT+2}, 0x3c, v0")
    a(f"v_lshlrev_b32 v{hT+2}, 2, v{hT+2}")
    a(f"s_lshl_b32 s{sT}, s{sP}, 10")
    a(f"v_add3_u32 v{hT+1}, v{hT}, v{hT+2}, s{sT}")
    a(f"global_load_dwordx4 v[{hQ}:{hQ+3}], v{hT+1}, s[4:5]", "q[lane & 3][8 * (lane >> 2) ..]")
    a(f"s_lshl_b32 s{sT}, s{sP}, 8")
    a(f"s_add_u32 s10, s10, s{sT}\ns_addc_u32 s11, s11, 0")
    a(f"s_add_u32 s12, s12, s{sT}\ns_addc_u32 s13, s13, 0")
    a(f"s_lshr_b32 s{sT2}, s{sP}, 4")
    a(f"s_lshl_b32 s{sT2}, s{sT2}, 2")
    a(f"s_load_dword s{sMask}, s[14:15], s{sT2}")
    for part in range(4):
        base = "s[10:11]" if part < 2 else "s[12:13]"
        off = (part % 2) * 128
        a(f"s_load_dwordx16 s[{sB}:{sB+15}], {base}, {off}")
        a(f"s_load_dwordx16 s[{sB+16}:{sB+31}], {base}, {off+64}")
        a("s_waitcnt lgkmcnt(0)")
        for i in range(32):
            a(f"v_writelane_b32 v{hKt + part//2}, s{sB+i}, {(part%2)*32+i}")
    a(f"v_lshlrev_b32 v{hT}, 2, v0")
    a(f"ds_write_b32 v{hT}, v{hKt} offset:{FT}")
    a(f"ds_write_b32 v{hT}, v{hKt+1} offset:{FT+256}")
    a(f"v_and_b32 v{hT+3}, 0x30, v0")
    a(f"v_lshlrev_b32 v{hT+3}, 2, v{hT+3}")
    a(f"v_and_b32 v{hT+1}, 12, v0")
    a(f"v_add_u32 v{hT+3}, v{hT+3}, v{hT+1}")
    a("s_waitcnt lgkmcnt(0)")
    a(f"ds_read_b128 v[{hKt}:{hKt+3}], v{hT+2} offset:{FT}")
    for r in range(4):
        a(f"ds_read_b32 v{hVt+r}, v{hT+3} offset:{FT+256+r*16}")
    a(f"v_mov_b32 v{hMt}, 0")
    a("s_waitcnt vmcnt(0) lgkmcnt(0)")
    for i in range(4):
        a(f"v_lshlrev_b32 v{hT}, 16, v{hQ+i}")
        a(f"v_lshlrev_b32 v{hT+1}, 16, v{hKt+i}")
        a(f"v_and_b32 v{hT+2}, 0xffff0000, v{hQ+i}")
        a(f"v_and_b32 v{hT+3}, 0xffff0000, v{hKt+i}")
        a(f"v_fmac_f32 v{hMt}, v{hT}, v{hT+1}")
        a(f"v_fmac_f32 v{hMt}, v{hT+2}, v{hT+3}")
    for r in range(4):
        a(f"v_lshlrev_b32 v{hO0+r}, 16, v{hVt+r}")
        a(f"v_and_b32 v{hO0+4+r}, 0xffff0000, v{hVt+r}")
    def reduce_hi4(reg):
        for s in (8, 4):
            a(f"v_add_f32_dpp v{reg}, v{reg}, v{reg} row_ror:{s} row_mask:0xf bank_mask:0xf")
            a("s_nop 1")
        a(f"v_mov_b32 v{hT}, v{reg}")
        a("s_nop 1")
        a(f"v_permlane16_swap_b32 v{reg}, v{hT}")
        a(f"v_add_f32 v{reg}, v{reg}, v{hT}")
        a(f"v_mov_b32 v{hT}, v{reg}")
        a("s_nop 1")
        a(f"v_permlane32_swap_b32 v{reg}, v{hT}")
        a(f"v_add_f32 v{reg}, v{reg}, v{hT}", "sum over the 16 lanes of a head")
    reduce_hi4(hMt)
    a(f"s_lshr_b32 s{sT}, s{sP}, 3")
    a(f"s_and_b32 s{sT}, s{sT}, 1")
    a(f"s_lshl_b32 s{sT}, s{sT}, 4")
    a(f"s_lshr_b32 s{sMask}, s{sMask}, s{sT}")
    a(f"s_lshl_b32 s{sMask}, s{sMask}, 16", "tree_mask[batch] as f32")
    a(f"v_sub_f32 v{hT}, 1.0, s{sMask}")
    a(f"v_mul_f32 v{hT}, {hex(f2u(-1e9*math.log2(math.e)))}, v{hT}", "(1 - mask) * -1e9 * log2(e)")
    a(f"v_fma_f32 v{hMt}, v{hMt}, s{sC}, v{hT}", "scaled score of the tree token")
    if warm:
        a("s_branch L_h_notree")
        a("L_h_warm:")
        a(f"s_getpc_b64 s[{sB}:{sB+1}]")
        a("L_pc:")
        a(f"s_sub_u32 s{sB}, s{sB}, L_pc-L_kloop")
        a(f"s_subb_u32 s{sB+1}, s{sB+1}, 0")
        a(f"s_mov_b32 s{sB+2}, 0")
        a("L_h_warm1:")
        a(f"s_load_dword s{sB+4}, s[{sB}:{sB+1}], s{sB+2}")
        a(f"s_add_u32 s{sB+2}, s{sB+2}, {warm}")
        a(f"s_cmp_le_u32 s{sB+2}, L_end-L_kloop")
        a("s_cbranch_scc1 L_h_warm1")
        a("s_waitcnt lgkmcnt(0)")
    a("L_h_notree:")
    fin_addr()
    a(f"v_and_b32 v{hT}, 3, v0")
    a(f"v_lshlrev_b32 v{hT}, 4, v{hT}")
    a(f"v_add_u32 v{hLS}, {SB}, v{vVoff}")
    a("L_h_ksync:")
    a("s_sleep 8", "wait for the scores of the four streaming waves")
    a(f"ds_read_b32 v{hT+1}, v{vPa} offset:{FK-FC}")
    a("s_waitcnt lgkmcnt(0)")
    a(f"v_readfirstlane_b32 s{sT}, v{hT+1}")
    a(f"s_cmp_lg_u32 s{sT}, {W}")
    a("s_cbranch_scc1 L_h_ksync")
    a(f"ds_read_b128 v[{hQ}:{hQ+3}], v{hT} offset:{FM}")
    a(f"s_cmp_lg_u32 s{sTag}, 0")
    a("s_cbranch_scc1 L_h_tag")
    a(f"s_load_dword s{sTag}, s[18:19], 0")
    a("s_waitcnt lgkmcnt(0)")
    a(f"s_cmp_lg_u32 s{sTag}, 0")
    a("s_cbranch_scc1 L_h_tag")
    propose()
    a("L_h_tag:")
    a("s_waitcnt lgkmcnt(0)")
    a(f"v_max3_f32 v{hM}, v{hQ}, v{hQ+1}, v{hQ+2}")
    a(f"v_max_f32 v{hM}, v{hM}, v{hQ+3}")
    a(f"v_mul_f32 v{hM}, s{sC}, v{hM}")
    a(f"v_mov_b32 v{hL}, 0")
    a(f"s_mov_b32 s{sCnt}, 16")
    a("L_h_sum:")
    a(f"ds_read_b128 v[{hQ}:{hQ+3}], v{hLS}")
    a(f"ds_read_b128 v[{hQ+4}:{hQ+7}], v{hLS} offset:1024")
    a(f"v_add_u32 v{hLS}, 2048, v{hLS}")
    a("s_waitcnt lgkmcnt(0)")
    for i in range(8):
        a(f"v_fma_f32 v{hQ+i}, v{hQ+i}, s{sC}, -v{hM}")
    for i in range(8):
        a(f"v_exp_f32 v{hQ+i}, v{hQ+i}")
    a(f"v_add_f32 v{hQ}, v{hQ}, v{hQ+1}")
    a(f"v_add_f32 v{hQ+2}, v{hQ+2}, v{hQ+3}")
    a(f"v_add_f32 v{hQ+4}, v{hQ+4}, v{hQ+5}")
    a(f"v_add_f32 v{hQ+6}, v{hQ+6}, v{hQ+7}")
    a(f"v_add_f32 v{hQ}, v{hQ}, v{hQ+2}")
    a(f"v_add_f32 v{hQ+4}, v{hQ+4}, v{hQ+6}")
    a(f"v_add_f32 v{hQ}, v{hQ}, v{hQ+4}")
    a(f"v_add_f32 v{hL}, v{hL}, v{hQ}")
    a(f"s_sub_u32 s{sCnt}, s{sCnt}, 1")
    a(f"s_cmp_lg_u32 s{sCnt}, 0")
    a("s_cbranch_scc1 L_h_sum")
    reduce_hi4(hL)
    a(f"s_cmp_eq_u32 s{sHalf}, 0")
    a("s_cbranch_scc1 L_h_wait")
    a(f"v_mov_b32 v{hQ}, v{hM}")
    a(f"v_mov_b32 v{hQ+1}, s{sTag}")
    a(f"v_mov_b32 v{hQ+2}, v{hL}")
    a(f"v_mov_b32 v{hQ+3}, s{sTag}")
    a(f"ds_write_b128 v{vSlot}, v[{hQ}:{hQ+3}] offset:{FO}")
    a(f"ds_write_b32 v{vT2}, v{hQ+1} offset:{FA}")
    a("s_branch L_arrive")
    a("L_h_wait:")
    a("s_sleep 4", "wait until the own streaming waves are nearly done")
    a(f"ds_read_b32 v{hT+2}, v{vPa} offset:{FP-FC}")
    a("s_waitcnt lgkmcnt(0)")
    a(f"v_readfirstlane_b32 s{sT}, v{hT+2}")
    a(f"s_cmp_eq_u32 s{sT}, 0")
    a("s_cbranch_scc1 L_h_wait")
    a("L_h_poll:")
    for k in (4, 0, 1, 2, 3):
        a(f"global_load_dwordx4 v[{hP+4*k}:{hP+4*k+3}], v{vG}, s[20:21] offset:{k*1024-2048} sc1")
    a("s_waitcnt vmcnt(0)")
    a(f"v_xor_b32 v{hT+1}, s{sTag}, v{hP+1}")
    a(f"v_xor_b32 v{hT+2}, s{sTag}, v{hP+3}")
    for i in range(2, 10):
        a(f"v_bitop3_b32 v{hT+1+i%2}, v{hP+2*i+1}, s{sTag}, v{hT+1+i%2} bitop3:0xbe", "(a ^ b) | c" if i == 2 else None)
    a(f"v_or_b32 v{hT+1}, v{hT+1}, v{hT+2}")
    a(f"v_cmp_ne_u32 vcc, 0, v{hT+1}")
    a("s_nop 0")
    a("s_cbranch_vccnz L_h_poll", "some pair does not carry the tag yet")
    a(f"v_max3_f32 v{hT}, v{hM}, v{hPM}, v{hMt}", "maximum of the whole row")
    a(f"v_sub_f32 v{hM}, v{hM}, v{hT}")
    a(f"v_sub_f32 v{hPM}, v{hPM}, v{hT}")
    a(f"v_sub_f32 v{hMt}, v{hMt}, v{hT}")
    a(f"v_exp_f32 v{hM}, v{hM}")
    a(f"v_exp_f32 v{hPM}, v{hPM}")
    a(f"v_exp_f32 v{hMt}, v{hMt}")
    a("s_nop 0")
    a(f"v_fma_f32 v{hT}, v{hL}, v{hM}, v{hMt}")
    a(f"v_fmac_f32 v{hT}, v{hPL}, v{hPM}", "softmax denominator")
    a(f"v_rcp_f32 v{hT}, v{hT}")
    a("s_nop 0")
    a(f"v_mul_f32 v{hM}, v{hM}, v{hT}")
    a(f"v_mul_f32 v{hPM}, v{hPM}, v{hT}")
    a(f"v_mul_f32 v{hMt}, v{hMt}, v{hT}")
    a(f"ds_write_b32 v{vT2}, v{hM} offset:{FA}")
    for i in range(8):
        a(f"v_mul_f32 v{hO0+i}, v{hO0+i}, v{hMt}")
    for i in range(8):
        a(f"v_fmac_f32 v{hO0+i}, v{PO(i)}, v{hPM}")
    a(f"ds_write_b128 v{vSlot}, v[{hO0}:{hO0+3}] offset:{FO}")
    a(f"ds_write_b128 v{vSlot}, v[{hO0+4}:{hO0+7}] offset:{FO+1024}")
    a("s_branch L_arrive")
    a("L_end:")
    a("s_endpgm")
    a('.section .rodata,"a"\n.p2align 6')
    L.append(f".amdhsa_kernel {KN}")
    L.append(f"  .amdhsa_next_free_vgpr {NV}\n  .amdhsa_next_free_sgpr 80\n  .amdhsa_accum_offset {NV}")
    L.append("  .amdhsa_group_segment_fixed_size 0\n  .amdhsa_kernarg_size 72\n  .amdhsa_user_sgpr_count 2\n  .amdhsa_user_sgpr_kernarg_segment_ptr 1\n  .amdhsa_system_sgpr_workgroup_id_x 1\n  .amdhsa_float_denorm_mode_32 3\n.end_amdhsa_kernel")
    return "\n".join(L) + "\n", G, (W + 1) * 64, LDS

if __name__ == "__main__":
    cfgs = eval(sys.argv[1])
    specs = []
    for name, kw in cfgs:
        asm, G, B, lds = gen(**kw)
        open(name + ".s", "w").write(asm)
        build(asm, name + ".co", KN)
        specs.append(f"{name}.co:{KN},{G},{B},{lds}:check")
    print(" ".join(specs))
    print(str(["work/bench", "work/specs.txt"] + ["work/" + s.split(":")[0] for s in specs]).replace("'", '"'))
```
